```python
import torch

def _softmax(x, axis=-1):
    return torch.softmax(x, dim=axis)
def _gelu(x):
    return torch.nn.functional.gelu(x, approximate="tanh")
def _silu(x):
    return torch.nn.functional.silu(x)
def _sigmoid(x):
    return torch.sigmoid(x)
def _layernorm(x, axis=-1, eps=1e-5):
    m = x.mean(dim=axis, keepdim=True)
    v = x.var(dim=axis, keepdim=True, unbiased=False)
    return (x - m) / torch.sqrt(v + eps)
def _scatter_add(tgt, idx, src, axis=0):
    return tgt.clone().index_add_(axis, idx, src)
def _segment_sum(src, seg, n):
    out = torch.zeros((n,) + src.shape[1:], dtype=src.dtype)
    return out.index_add_(0, seg, src)
def _pad(x, pw):
    flat = tuple(v for pair in reversed(pw) for v in pair)
    return torch.nn.functional.pad(x, flat)

kernel_name = 'standalone__instancenorm__prompt'

def setup_inputs():

    _w = (lambda a: (lambda t: t.to(torch.bfloat16) if t.is_floating_point() else t)(torch.as_tensor(a)))
    B, C, H, W = 1, 448, 2048, 16
    return {
        "x": _w(abs((lambda *s: torch.randn(*s, dtype=torch.bfloat16) * 0.05)(B, C, H, W))),
        "g": _w((lambda *s: torch.randn(*s, dtype=torch.bfloat16) * 0.05)(C) + 1.0),
        "b": _w((lambda *s: torch.randn(*s, dtype=torch.bfloat16) * 0.4)(C)),
    }

def reference(x, g, b):
    mu = x.mean(axis=(-2, -1), keepdims=True)
    var = ((x - mu) ** 2).mean(axis=(-2, -1), keepdims=True)
    xhat = (x - mu) / torch.sqrt(var + 1e-5)
    return xhat * g.reshape(1, -1, 1, 1) + b.reshape(1, -1, 1, 1)
```

```python
import sys, argparse

HEADER = """; Kernarg layout for this problem (48 bytes, ptrs only, base s[0:1]):
; @launch grid=({grid},1,1) block=({block},1,1) lds={lds}
.amdgcn_target "amdgcn-amd-amdhsa--gfx950"
.text
.globl standalone__instancenorm__prompt_kernel
.p2align 8
.type standalone__instancenorm__prompt_kernel,@function
standalone__instancenorm__prompt_kernel:
"""
FOOTER = """
.section .rodata,"a"
.p2align 6
.amdhsa_kernel standalone__instancenorm__prompt_kernel
  .amdhsa_next_free_vgpr {vgpr}
  .amdhsa_next_free_sgpr {sgpr}
  .amdhsa_accum_offset {accum}
  .amdhsa_group_segment_fixed_size 0
  .amdhsa_kernarg_size 48
  .amdhsa_user_sgpr_count 2
  .amdhsa_user_sgpr_kernarg_segment_ptr 1
  .amdhsa_system_sgpr_workgroup_id_x 1
  .amdhsa_float_denorm_mode_32 3
.end_amdhsa_kernel
"""

def gen(block=1024, mode="fp32", ldflags="", stflags="", spin=0, stamp=0):
    C = 448
    CH_BYTES = 65536
    nwaves = block // 64
    nld = CH_BYTES // (block * 16)
    L = []
    e = L.append
    D0 = 8
    ND = nld * 4
    T0 = D0 + ND
    nst = [0]
    def st():
        if stamp:
            e("    s_memrealtime s[%d:%d]" % (40 + 2 * nst[0], 41 + 2 * nst[0]))
            nst[0] += 1
    if spin:
        e("    s_memrealtime s[30:31]")
    st()
    e("    s_cmp_ge_u32 s2, %d" % C)
    e("    s_cbranch_scc1 L_end")
    e("    s_load_dwordx4 s[4:7], s[0:1], 0       ; x, g")
    e("    s_load_dwordx4 s[8:11], s[0:1], 16     ; b, out")
    e("    v_lshrrev_b32 v1, 6, v0")
    e("    v_and_b32 v2, 63, v0                   ; lane")
    e("    v_lshlrev_b32 v3, 4, v2                ; lane*16")
    import math
    sh = int(math.log2(nld * 1024))
    e("    v_lshl_add_u32 v3, v1, %d, v3          ; + wave*chunk" % sh)
    e("    s_lshl_b32 s12, s2, 16")
    e("    s_and_b32 s13, s2, 0xfffffffe")
    e("    s_lshl_b32 s13, s13, 1")
    if stamp:
        e("    s_load_dwordx2 s[34:35], s[0:1], 40")
    e("    s_waitcnt lgkmcnt(0)")
    st()
    e("    s_add_u32 s4, s4, s12")
    e("    s_addc_u32 s5, s5, 0")
    e("    s_add_u32 s10, s10, s12")
    e("    s_addc_u32 s11, s11, 0")
    addr = {}
    ngroups = (nld + 3) // 4
    for gidx in range(ngroups):
        if gidx == 0:
            addr[gidx] = 3
        else:
            addr[gidx] = 3 + gidx
            e("    v_add_u32 v%d, %d, v3" % (addr[gidx], gidx * 4096))
    for i in range(nld):
        e("    global_load_dwordx4 v[%d:%d], v%d, s[4:5] offset:%d %s" % (D0 + 4 * i, D0 + 4 * i + 3, addr[i // 4], (i % 4) * 1024, ldflags))
    e("    s_load_dword s14, s[6:7], s13          ; g pair")
    e("    s_load_dword s15, s[8:9], s13          ; b pair")
    e("    s_mov_b32 s16, 0x3f803f80              ; bf16 (1.0, 1.0)")
    A0, A1 = T0, T0 + 1
    e("    v_mov_b32 v%d, 0" % A0)
    e("    v_mov_b32 v%d, 0" % A1)
    e("    v_lshlrev_b32 v1, 2, v1")
    e("    v_and_b32 v2, %d, v2" % (nwaves - 1))
    e("    v_lshlrev_b32 v2, 2, v2")
    for i in range(nld):
        e("    s_waitcnt vmcnt(%d)" % (nld - 1 - i))
        if i == 0 or i == nld - 1:
            st()
        for j in range(4):
            acc = A0 if j % 2 == 0 else A1
            e("    v_dot2c_f32_bf16 v%d, s16, v%d" % (acc, D0 + 4 * i + j))
    e("    s_nop 2")
    e("    v_add_f32 v%d, v%d, v%d" % (A0, A0, A1))

    def wave_reduce(r):
        for ctl in ["quad_perm:[1,0,3,2] row_mask:0xf bank_mask:0xf", "quad_perm:[2,3,0,1] row_mask:0xf bank_mask:0xf",
                    "row_half_mirror row_mask:0xf bank_mask:0xf", "row_mirror row_mask:0xf bank_mask:0xf",
                    "row_bcast:15 row_mask:0xa bank_mask:0xf", "row_bcast:31 row_mask:0xc bank_mask:0xf"]:
            e("    s_nop 1")
            e("    v_add_f32_dpp v%d, v%d, v%d %s" % (r, r, r, ctl))

    def block_reduce(r, ldsoff):
        wave_reduce(r)
        e("    s_mov_b64 exec, 0x8000000000000000") if False else None
        e("    s_nop 0")
        e("    v_readlane_b32 s20, v%d, 63" % r)
        e("    s_nop 1")
        e("    v_mov_b32 v%d, s20" % r)
        e("    ds_write_b32 v1, v%d offset:%d" % (r, ldsoff))
        e("    s_waitcnt lgkmcnt(0)")
        e("    s_barrier")
        e("    ds_read_b32 v%d, v2 offset:%d" % (r, ldsoff))
        e("    s_waitcnt lgkmcnt(0)")
        ctls = ["quad_perm:[1,0,3,2] row_mask:0xf bank_mask:0xf", "quad_perm:[2,3,0,1] row_mask:0xf bank_mask:0xf",
                "row_half_mirror row_mask:0xf bank_mask:0xf", "row_mirror row_mask:0xf bank_mask:0xf"]
        n = int(math.log2(nwaves))
        for k, ctl in enumerate(ctls[:n]):
            e("    s_nop 1")
            e("    v_add_f32_dpp v%d, v%d, v%d %s" % (r, r, r, ctl))

    block_reduce(A0, 0)
    st()
    MU = T0 + 2
    e("    v_mul_f32 v%d, 0x38000000, v%d          ; * 2^-15" % (A0, A0))
    e("    v_cvt_pk_bf16_f32 v%d, v%d, v%d" % (A0, A0, A0))
    e("    v_and_b32 v%d, 0xffff0000, v%d          ; mean rounded to bf16, as f32" % (MU, A0))
    e("    v_mov_b32 v%d, v%d" % (MU + 1, MU))
    e("    v_mov_b32 v%d, 0" % A0)
    e("    v_mov_b32 v%d, 0" % A1)
    X = T0 + 4
    for i in range(ND):
        d = D0 + i
        t = X + 2 * (i % 4)
        e("    v_lshlrev_b32 v%d, 16, v%d" % (t, d))
        e("    v_and_b32 v%d, 0xffff0000, v%d" % (t + 1, d))
        e("    v_pk_add_f32 v[%d:%d], v[%d:%d], v[%d:%d] neg_lo:[0,1] neg_hi:[0,1]" % (t, t + 1, t, t + 1, MU, MU + 1))
        e("    v_cvt_pk_bf16_f32 v%d, v%d, v%d" % (d, t, t + 1))
        acc = A0 if i % 2 == 0 else A1
        e("    v_dot2c_f32_bf16 v%d, v%d, v%d" % (acc, d, d))
    e("    s_nop 2")
    e("    v_add_f32 v%d, v%d, v%d" % (A0, A0, A1))
    block_reduce(A0, 64)
    st()
    e("    v_mul_f32 v%d, 0x38000000, v%d" % (A0, A0))
    e("    v_cvt_pk_bf16_f32 v%d, v%d, v%d" % (A0, A0, A0))
    e("    v_and_b32 v%d, 0xffff0000, v%d" % (A0, A0))
    e("    v_add_f32 v%d, 0x3727c5ac, v%d          ; + 1e-5" % (A0, A0))
    e("    v_cvt_pk_bf16_f32 v%d, v%d, v%d" % (A0, A0, A0))
    e("    v_and_b32 v%d, 0xffff0000, v%d" % (A0, A0))
    e("    v_sqrt_f32 v%d, v%d" % (A0, A0))
    e("    s_nop 0")
    e("    v_cvt_pk_bf16_f32 v%d, v%d, v%d" % (A0, A0, A0))
    e("    v_and_b32 v%d, 0xffff0000, v%d" % (A0, A0))
    e("    v_rcp_f32 v%d, v%d" % (A0, A0))
    e("    s_bitcmp1_b32 s2, 0")
    e("    s_cselect_b32 s17, 0, 16")
    e("    s_lshl_b32 s14, s14, s17")
    e("    s_lshl_b32 s15, s15, s17")
    e("    s_and_b32 s14, s14, 0xffff0000")
    e("    s_and_b32 s15, s15, 0xffff0000")
    R = MU
    if mode == "fp32":
        e("    v_mul_f32 v%d, s14, v%d" % (R, A0))
        e("    v_mul_f32 v%d, s14, v%d" % (R + 1, A0))
        e("    v_mov_b32 v%d, s15" % A0)
        e("    v_mov_b32 v%d, s15" % A1)
        for i in range(nld):
            for j in range(4):
                d = D0 + 4 * i + j
                t = X + 2 * j
                e("    v_lshlrev_b32 v%d, 16, v%d" % (t, d))
                e("    v_and_b32 v%d, 0xffff0000, v%d" % (t + 1, d))
                e("    v_pk_fma_f32 v[%d:%d], v[%d:%d], v[%d:%d], v[%d:%d]" % (t, t + 1, t, t + 1, R, R + 1, A0, A1))
                e("    v_cvt_pk_bf16_f32 v%d, v%d, v%d" % (d, t, t + 1))
            e("    global_store_dwordx4 v%d, v[%d:%d], s[10:11] offset:%d %s" % (addr[i // 4], D0 + 4 * i, D0 + 4 * i + 3, (i % 4) * 1024, stflags))
    else:
        e("    v_mov_b32 v%d, v%d" % (R, A0))
        e("    v_mov_b32 v%d, v%d" % (R + 1, A0))
        e("    s_mov_b32 s18, s14")
        e("    s_mov_b32 s19, s14")
        e("    s_mov_b32 s22, s15")
        e("    s_mov_b32 s23, s15")
        for i in range(nld):
            for j in range(4):
                d = D0 + 4 * i + j
                t = X + 2 * j
                e("    v_lshlrev_b32 v%d, 16, v%d" % (t, d))
                e("    v_and_b32 v%d, 0xffff0000, v%d" % (t + 1, d))
                e("    v_pk_mul_f32 v[%d:%d], v[%d:%d], v[%d:%d]" % (t, t + 1, t, t + 1, R, R + 1))
                e("    v_cvt_pk_bf16_f32 v%d, v%d, v%d" % (d, t, t + 1))
                e("    v_lshlrev_b32 v%d, 16, v%d" % (t, d))
                e("    v_and_b32 v%d, 0xffff0000, v%d" % (t + 1, d))
                e("    v_pk_mul_f32 v[%d:%d], v[%d:%d], s[18:19]" % (t, t + 1, t, t + 1))
                e("    v_cvt_pk_bf16_f32 v%d, v%d, v%d" % (d, t, t + 1))
                e("    v_lshlrev_b32 v%d, 16, v%d" % (t, d))
                e("    v_and_b32 v%d, 0xffff0000, v%d" % (t + 1, d))
                e("    v_pk_add_f32 v[%d:%d], v[%d:%d], s[22:23]" % (t, t + 1, t, t + 1))
                e("    v_cvt_pk_bf16_f32 v%d, v%d, v%d" % (d, t, t + 1))
            e("    global_store_dwordx4 v%d, v[%d:%d], s[10:11] offset:%d %s" % (addr[i // 4], D0 + 4 * i, D0 + 4 * i + 3, (i % 4) * 1024, stflags))
    if stamp:
        st()
        e("    s_waitcnt vmcnt(0)")
        st()
        e("    s_getreg_b32 s36, hwreg(HW_REG_HW_ID)")
        e("    s_getreg_b32 s37, hwreg(HW_REG_XCC_ID)")
        e("    s_waitcnt lgkmcnt(0)")
        e("    v_lshrrev_b32 v1, 6, v0")
        e("    s_mul_i32 s38, s2, %d" % nwaves)
        e("    v_add_u32 v1, s38, v1")
        e("    v_lshlrev_b32 v1, 6, v1")
        for k in range(8):
            e("    v_mov_b32 v%d, s%d" % (8 + k, 40 + 2 * k))
        e("    v_mov_b32 v16, s36")
        e("    v_mov_b32 v17, s37")
        e("    v_mov_b32 v18, 0")
        e("    v_mov_b32 v19, 0")
        e("    s_mov_b64 exec, 1")
        e("    global_store_dwordx4 v1, v[8:11], s[34:35]")
        e("    global_store_dwordx4 v1, v[12:15], s[34:35] offset:16")
        e("    global_store_dwordx4 v1, v[16:19], s[34:35] offset:32")
    if spin:
        e("    s_cmp_lg_u32 s2, 0")
        e("    s_cbranch_scc1 L_end")
        e("L_spin:")
        e("    s_memrealtime s[32:33]")
        e("    s_waitcnt lgkmcnt(0)")
        e("    s_sub_u32 s32, s32, s30")
        e("    s_cmp_lt_u32 s32, %d" % spin)
        e("    s_cbranch_scc1 L_spin")
    e("L_end:")
    e("    s_endpgm")
    nv = X + 8
    nv4 = (nv + 3) // 4 * 4
    return HEADER.format(grid=C, block=block, lds=128) + "\n".join(L) + FOOTER.format(vgpr=nv, sgpr=64, accum=nv4)

if __name__ == "__main__":
    ap = argparse.ArgumentParser()
    ap.add_argument("--block", type=int, default=1024)
    ap.add_argument("--mode", default="fp32")
    ap.add_argument("--ld", default="")
    ap.add_argument("--st", default="")
    ap.add_argument("--spin", type=int, default=0)
    ap.add_argument("--stamp", type=int, default=0)
    ap.add_argument("-o", default="/dev/stdout")
    a = ap.parse_args()
    open(a.o, "w").write(gen(a.block, a.mode, a.ld, a.st, a.spin, a.stamp))
```

```python
import argparse, gen1
def gen(slot, base, stride, n, only):
    real = gen1.gen(1024, "fp32", "nt", "nt")
    hdr_old = "; @launch grid=(448,1,1) block=(1024,1,1) lds=128"
    if only:
        hdr = "; @launch grid=(1,1,1) block=(64,1,1) lds=0"
    else:
        hdr = "; @launch kernel=probe_kernel grid=(1,1,1) block=(64,1,1) lds=0\n; @launch kernel=standalone__instancenorm__prompt_kernel grid=(448,1,1) block=(1024,1,1) lds=128"
    body = """
    s_cmp_ge_u32 s2, 1
    s_cbranch_scc1 P_end
    s_load_dwordx2 s[4:5], s[0:1], %d
    s_mov_b64 exec, 1
    v_mov_b32 v1, %d
    s_mov_b32 s6, 0
    s_waitcnt lgkmcnt(0)
P_loop:
    global_load_dword v2, v1, s[4:5] nt
    s_waitcnt vmcnt(0)
    v_add_u32 v1, %d, v1
    s_add_u32 s6, s6, 1
    s_cmp_lt_u32 s6, %d
    s_cbranch_scc1 P_loop
P_end:
    s_endpgm
""" % (slot * 8, base, stride, n)
    if only:
        return gen1.HEADER.format(grid=1, block=64, lds=0) + body + gen1.FOOTER.format(vgpr=8, sgpr=16, accum=8)
    s = real.replace(hdr_old, hdr)
    probe = ".text\n.globl probe_kernel\n.p2align 8\n.type probe_kernel,@function\nprobe_kernel:" + body
    kd = gen1.FOOTER.format(vgpr=8, sgpr=16, accum=8).replace("standalone__instancenorm__prompt_kernel", "probe_kernel")
    return s + probe + kd
if __name__ == "__main__":
    ap = argparse.ArgumentParser()
    ap.add_argument("--slot", type=int, default=0)
    ap.add_argument("--base", type=int, default=0)
    ap.add_argument("--stride", type=int, default=27 * 8192 + 128)
    ap.add_argument("--n", type=int, default=128)
    ap.add_argument("--only", type=int, default=0)
    ap.add_argument("-o", default="/dev/stdout")
    a = ap.parse_args()
    open(a.o, "w").write(gen(a.slot, a.base, a.stride, a.n, a.only))
```

```python
import sys, argparse, math
from gen1 import HEADER, FOOTER
C = 448
CH_BYTES = 65536
DPP4 = ["quad_perm:[1,0,3,2] row_mask:0xf bank_mask:0xf", "quad_perm:[2,3,0,1] row_mask:0xf bank_mask:0xf",
        "row_half_mirror row_mask:0xf bank_mask:0xf", "row_mirror row_mask:0xf bank_mask:0xf"]
DPP2 = ["row_bcast:15 row_mask:0xa bank_mask:0xf", "row_bcast:31 row_mask:0xc bank_mask:0xf"]

def gen(G=448, block=1024, ldflags="nt", stflags="nt", stamp=0, style="dot", ahead=99, order="wave", warm=0):
    nwaves = block // 64
    nld = CH_BYTES // (block * 16)
    K = (C + G - 1) // G
    full = C - (K - 1) * G
    ahead = min(ahead, K)
    npl = nld * 8
    L = []
    e = L.append
    nst = [0]
    def st():
        if stamp:
            e("    s_cbranch_vccz L_nost%d" % nst[0])
            e("    s_memrealtime s[%d:%d]" % (48 + 2 * nst[0], 49 + 2 * nst[0]))
            e("L_nost%d:" % nst[0])
            nst[0] += 1
    per = nld * (8 if style == "unp" else 4)
    D0 = 8
    T0 = D0 + per * ahead
    A1, A2 = T0, T0 + 2
    P = T0 + 4
    Q = T0 + 6
    X = T0 + 8
    if stamp:
        e("    v_cmp_gt_u32 vcc, 64, v0")
        e("    s_nop 4")
    st()
    e("    s_cmp_ge_u32 s2, %d" % G)
    e("    s_cbranch_scc1 L_end")
    e("    s_load_dwordx4 s[4:7], s[0:1], 0       ; x, g")
    e("    s_load_dwordx4 s[8:11], s[0:1], 16     ; b, out")
    if stamp:
        e("    s_load_dwordx2 s[44:45], s[0:1], 40")
    e("    v_lshrrev_b32 v1, 6, v0                ; wave id")
    e("    v_and_b32 v2, 63, v0                   ; lane")
    if order == "wave":
        e("    v_lshlrev_b32 v3, 4, v2                ; lane*16")
        e("    v_lshl_add_u32 v3, v1, %d, v3          ; + wave*chunk" % int(math.log2(nld * 1024)))
        step = 1024
    else:
        e("    v_lshlrev_b32 v3, 4, v0")
        step = block * 16
    e("    s_lshl_b32 s12, s2, 16")
    e("    s_lshl_b32 s13, s2, 1")
    e("    v_lshlrev_b32 v1, 4, v1                ; LDS slot of this wave (16 B)")
    e("    v_and_b32 v2, %d, v2" % (nwaves - 1))
    e("    v_lshlrev_b32 v2, 4, v2")
    e("    s_waitcnt lgkmcnt(0)")
    st()
    e("    s_add_u32 s16, s4, s12")
    e("    s_addc_u32 s17, s5, 0")
    e("    s_sub_u32 s18, %d, s12" % (C * CH_BYTES))
    e("    s_mov_b32 s19, 0x20000")
    offs = [(i * step) for i in range(nld)]
    his = sorted(set(o // 4096 * 4096 for o in offs))
    def issue_loads(k):
        slot = k % ahead
        for i in range(nld):
            o = offs[i]
            hi, lo = o // 4096 * 4096, o % 4096
            tot = k * G * CH_BYTES + hi
            if i == 0 or hi != offs[i - 1] // 4096 * 4096:
                if tot:
                    e("    s_mov_b32 s24, %d" % tot)
            so = "s24" if tot else "0"
            if style == "unp":
                d = D0 + slot * per + 8 * i + 4
            else:
                d = D0 + slot * per + 4 * i
            e("    buffer_load_dwordx4 v[%d:%d], v3, s[16:19], %s offen offset:%d %s" % (d, d + 3, so, lo, ldflags))
    for k in range(ahead):
        issue_loads(k)
    e("    s_add_u32 s20, s10, s12")
    e("    s_addc_u32 s21, s11, 0")
    e("    s_mov_b32 s22, s18")
    e("    s_mov_b32 s23, 0x20000")
    if warm == 1:
        for k in range(K):
            e("    s_add_u32 s25, s12, %d" % (k * G * CH_BYTES))
            e("    s_min_u32 s25, s25, %d" % ((C - 1) * CH_BYTES))
            e("    s_load_dword s42, s[10:11], s25")
    for k in range(K):
        e("    s_add_u32 s25, s13, %d" % (k * G * 2))
        e("    s_min_u32 s25, s25, %d" % (C * 2 - 2))
        e("    s_and_b32 s25, s25, 0xfffffffc")
        e("    s_load_dword s%d, s[6:7], s25" % (32 + 2 * k))
        e("    s_load_dword s%d, s[8:9], s25" % (33 + 2 * k))
    e("    s_mov_b32 s26, 0x3f803f80              ; bf16 (1.0, 1.0)")
    outstanding = []
    for k in range(ahead):
        outstanding += [("L", k, i) for i in range(nld)]
    if warm == 2:
        for k in range(K):
            e("    s_mov_b32 s24, %d" % (k * G * CH_BYTES))
            e("    buffer_load_dword v4, off, s[20:23], s24 nt")
            outstanding.append(("W", k, 0))
    def wait_for(tag):
        idx = outstanding.index(tag)
        n = len(outstanding) - 1 - idx
        e("    s_waitcnt vmcnt(%d)" % min(n, 63))
    for k in range(K):
        slot = k % ahead
        B = D0 + slot * per
        if k == K - 1 and full < G:
            e("    s_cmp_ge_u32 s2, %d" % full)
            e("    s_cbranch_scc1 L_fin")
        for i in range(nld):
            wait_for(("L", k, i))
            if i == 0 and k == 0: st()
            if i == nld - 1: st()
            if style == "dot":
                if i == 0:
                    e("    v_readfirstlane_b32 s27, v%d" % B)
                    e("    v_mov_b32 v%d, 0" % A1)
                    e("    v_mov_b32 v%d, 0" % (A1 + 1))
                    e("    v_mov_b32 v%d, 0" % A2)
                    e("    v_mov_b32 v%d, 0" % (A2 + 1))
                    e("    s_and_b32 s27, s27, 0xffff0000          ; pivot")
                for j in range(4):
                    d = B + 4 * i + j
                    e("    v_dot2c_f32_bf16 v%d, s26, v%d" % (A1 + j % 2, d))
                    e("    v_dot2c_f32_bf16 v%d, v%d, v%d" % (A2 + j % 2, d, d))
            else:
                if i == 0:
                    e("    v_readfirstlane_b32 s27, v%d" % (B + 4))
                    e("    s_and_b32 s27, s27, 0xffff0000          ; pivot")
                    e("    s_xor_b32 s28, s27, 0x80000000")
                    e("    s_mov_b32 s29, s28")
                for j in range(4):
                    s = B + 8 * i + 4 + j
                    d = B + 8 * i + 2 * j
                    e("    v_lshlrev_b32 v%d, 16, v%d" % (d, s))
                    e("    v_and_b32 v%d, 0xffff0000, v%d" % (d + 1, s))
                for j in range(4):
                    d = B + 8 * i + 2 * j
                    e("    v_pk_add_f32 v[%d:%d], v[%d:%d], s[28:29]" % (d, d + 1, d, d + 1))
                for j in range(4):
                    d = B + 8 * i + 2 * j
                    if i == 0 and j == 0:
                        e("    v_pk_mul_f32 v[%d:%d], v[%d:%d], v[%d:%d]" % (A2, A2 + 1, d, d + 1, d, d + 1))
                    elif i == 0 and j == 1:
                        e("    v_pk_add_f32 v[%d:%d], v[%d:%d], v[%d:%d]" % (A1, A1 + 1, d - 2, d - 1, d, d + 1))
                        e("    v_pk_fma_f32 v[%d:%d], v[%d:%d], v[%d:%d], v[%d:%d]" % (A2, A2 + 1, d, d + 1, d, d + 1, A2, A2 + 1))
                    else:
                        e("    v_pk_add_f32 v[%d:%d], v[%d:%d], v[%d:%d]" % (A1, A1 + 1, A1, A1 + 1, d, d + 1))
                        e("    v_pk_fma_f32 v[%d:%d], v[%d:%d], v[%d:%d], v[%d:%d]" % (A2, A2 + 1, d, d + 1, d, d + 1, A2, A2 + 1))
        if style == "dot":
            h = npl // 2
            e("    v_mov_b32 v%d, s27" % P)
            e("    v_mul_f32 v%d, %s, v%d" % (P + 1, repr(float(h)) if h in (1, 2, 4) else hex(0x3f800000 + (int(math.log2(h)) << 23)), P))
            e("    v_mul_f32 v%d, -2.0, v%d" % (Q, P))
            e("    v_fma_f32 v%d, v%d, v%d, v%d" % (A2, Q, A1, A2))
            e("    v_fma_f32 v%d, v%d, v%d, v%d" % (A2 + 1, Q, A1 + 1, A2 + 1))
            e("    v_sub_f32 v%d, v%d, v%d" % (A1, A1, P + 1))
            e("    v_sub_f32 v%d, v%d, v%d" % (A1 + 1, A1 + 1, P + 1))
            e("    v_fma_f32 v%d, v%d, v%d, v%d" % (A2, P, P + 1, A2))
            e("    v_fma_f32 v%d, v%d, v%d, v%d" % (A2 + 1, P, P + 1, A2 + 1))
        e("    v_add_f32 v%d, v%d, v%d" % (A1, A1, A1 + 1))
        e("    v_add_f32 v%d, v%d, v%d" % (A1 + 1, A2, A2 + 1))
        e("    v_mov_b32 v%d, s27" % A2)
        for ctl in DPP4 + DPP2:
            e("    s_nop 0")
            e("    v_add_f32_dpp v%d, v%d, v%d %s" % (A1, A1, A1, ctl))
            e("    v_add_f32_dpp v%d, v%d, v%d %s" % (A1 + 1, A1 + 1, A1 + 1, ctl))
        ldsoff = (k % 2) * 256
        e("    s_mov_b64 exec, 0x8000000000000000") if False else None
        e("    s_lshl_b64 exec, 1, 63")
        e("    ds_write_b96 v1, v[%d:%d] offset:%d" % (A1, A1 + 2, ldsoff))
        e("    s_mov_b64 exec, -1")
        e("    s_waitcnt lgkmcnt(0)")
        e("    s_barrier")
        e("    ds_read_b96 v[%d:%d], v2 offset:%d" % (A1, A1 + 2, ldsoff))
        e("    s_add_u32 s25, s2, %d" % (k * G))
        e("    s_bitcmp1_b32 s25, 0")
        e("    s_cselect_b32 s25, 0, 16")
        e("    s_lshl_b32 s30, s%d, s25" % (32 + 2 * k))
        e("    s_lshl_b32 s31, s%d, s25" % (33 + 2 * k))
        e("    s_and_b32 s30, s30, 0xffff0000")
        e("    s_and_b32 s31, s31, 0xffff0000")
        e("    s_waitcnt lgkmcnt(0)")
        nw = npl * 64
        e("    v_subrev_f32 v%d, s27, v%d" % (A2, A2))
        e("    v_mul_f32 v%d, %s, v%d" % (A2 + 1, hex(0x3f800000 + (int(math.log2(nw)) << 23)), A2))
        e("    v_fma_f32 v%d, 2.0, v%d, v%d" % (P, A1, A2 + 1))
        e("    v_add_f32 v%d, v%d, v%d" % (A1, A1, A2 + 1))
        e("    v_fma_f32 v%d, v%d, v%d, v%d" % (A1 + 1, P, A2, A1 + 1))
        for ctl in DPP4[:int(math.log2(nwaves))]:
            e("    s_nop 0")
            e("    v_add_f32_dpp v%d, v%d, v%d %s" % (A1, A1, A1, ctl))
            if ctl == DPP4[0]:
                e("    s_nop 0")
            e("    v_add_f32_dpp v%d, v%d, v%d %s" % (A1 + 1, A1 + 1, A1 + 1, ctl))
        e("    v_mul_f32 v%d, 0x38000000, v%d" % (A1, A1))
        e("    v_mul_f32 v%d, 0x38000000, v%d" % (A1 + 1, A1 + 1))
        e("    v_add_f32 v%d, s27, v%d                ; mean" % (A2, A1))
        e("    v_cvt_pk_bf16_f32 v%d, v%d, v%d" % (A2, A2, A2))
        e("    v_and_b32 v%d, 0xffff0000, v%d         ; mu = bf16(mean)" % (A2, A2))
        e("    v_subrev_f32 v%d, s27, v%d             ; e = mu - p" % (A2 + 1, A2))
        e("    v_fma_f32 v%d, -2.0, v%d, v%d" % (A1, A1, A2 + 1))
        e("    v_fma_f32 v%d, v%d, v%d, v%d" % (A1, A1, A2 + 1, A1 + 1))
        e("    v_max_f32 v%d, 0, v%d" % (A1, A1))
        e("    v_cvt_pk_bf16_f32 v%d, v%d, v%d" % (A1, A1, A1))
        e("    v_and_b32 v%d, 0xffff0000, v%d" % (A1, A1))
        e("    v_add_f32 v%d, 0x3727c5ac, v%d          ; + 1e-5" % (A1, A1))
        e("    v_cvt_pk_bf16_f32 v%d, v%d, v%d" % (A1, A1, A1))
        e("    v_and_b32 v%d, 0xffff0000, v%d" % (A1, A1))
        e("    v_sqrt_f32 v%d, v%d" % (A1, A1))
        e("    s_nop 0")
        e("    v_cvt_pk_bf16_f32 v%d, v%d, v%d" % (A1, A1, A1))
        e("    v_and_b32 v%d, 0xffff0000, v%d" % (A1, A1))
        e("    v_rcp_f32 v%d, v%d" % (A1, A1))
        e("    v_mov_b32 v%d, s31" % Q)
        e("    v_mul_f32 v%d, s30, v%d                ; a = g / sd" % (P, A1))
        sh = A2 if style == "dot" else A2 + 1
        e("    v_fma_f32 v%d, -v%d, v%d, v%d          ; b' = b - shift*a" % (Q, sh, P, Q))
        st()
        for i in range(nld):
            if style == "dot":
                for j in range(4):
                    d = B + 4 * i + j
                    t = X + 2 * j
                    e("    v_lshlrev_b32 v%d, 16, v%d" % (t, d))
                    e("    v_and_b32 v%d, 0xffff0000, v%d" % (t + 1, d))
                for j in range(4):
                    t = X + 2 * j
                    e("    v_pk_fma_f32 v[%d:%d], v[%d:%d], v[%d:%d], v[%d:%d] op_sel_hi:[1,0,0]" % (t, t + 1, t, t + 1, P, P + 1, Q, Q + 1))
                for j in range(4):
                    d = B + 4 * i + j
                    t = X + 2 * j
                    e("    v_cvt_pk_bf16_f32 v%d, v%d, v%d" % (d, t, t + 1))
                sd = B + 4 * i
            else:
                for j in range(4):
                    t = B + 8 * i + 2 * j
                    e("    v_pk_fma_f32 v[%d:%d], v[%d:%d], v[%d:%d], v[%d:%d] op_sel_hi:[1,0,0]" % (t, t + 1, t, t + 1, P, P + 1, Q, Q + 1))
                for j in range(4):
                    t = B + 8 * i + 2 * j
                    e("    v_cvt_pk_bf16_f32 v%d, v%d, v%d" % (B + 8 * i + j, t, t + 1))
                sd = B + 8 * i
            o = offs[i]
            hi, lo = o // 4096 * 4096, o % 4096
            tot = k * G * CH_BYTES + hi
            if (i == 0 or hi != offs[i - 1] // 4096 * 4096) and tot:
                e("    s_mov_b32 s24, %d" % tot)
            so = "s24" if tot else "0"
            e("    buffer_store_dwordx4 v[%d:%d], v3, s[20:23], %s offen offset:%d %s" % (sd, sd + 3, so, lo, stflags))
            outstanding.append(("S", k, i))
        st()
        if k + ahead < K:
            wait_for(("S", k, nld - 1))
            issue_loads(k + ahead)
            outstanding += [("L", k + ahead, i) for i in range(nld)]
    e("L_fin:")
    if stamp:
        e("    s_waitcnt vmcnt(0)")
        st()
        e("    s_cbranch_vccz L_end")
        e("    s_getreg_b32 s46, hwreg(HW_REG_HW_ID)")
        e("    s_getreg_b32 s47, hwreg(HW_REG_XCC_ID)")
        e("    s_waitcnt lgkmcnt(0)")
        e("    s_lshl_b32 s43, s2, 6")
        e("    v_mov_b32 v1, s43")
        assert nst[0] <= 12 or True
        for k in range(14):
            e("    v_mov_b32 v%d, s%d" % (8 + k, 48 + 2 * k) if k < nst[0] else "    v_mov_b32 v%d, 0" % (8 + k))
        e("    v_mov_b32 v22, s46")
        e("    v_mov_b32 v23, s47")
        e("    s_mov_b64 exec, 1")
        for q in range(4):
            e("    global_store_dwordx4 v1, v[%d:%d], s[44:45] offset:%d" % (8 + 4 * q, 11 + 4 * q, 16 * q))
    e("L_end:")
    e("    s_endpgm")
    nv = max(X + 8, 24)
    assert nst[0] <= 13, nst[0]
    return HEADER.format(grid=G, block=block, lds=512) + "\n".join(L) + FOOTER.format(vgpr=nv, sgpr=(48 + 2 * nst[0] if stamp else 44), accum=(nv + 3) // 4 * 4)

if __name__ == "__main__":
    ap = argparse.ArgumentParser()
    ap.add_argument("--G", type=int, default=448)
    ap.add_argument("--block", type=int, default=1024)
    ap.add_argument("--ld", default="nt")
    ap.add_argument("--st", default="nt")
    ap.add_argument("--stamp", type=int, default=0)
    ap.add_argument("--style", default="dot")
    ap.add_argument("--ahead", type=int, default=99)
    ap.add_argument("--order", default="wave")
    ap.add_argument("--warm", type=int, default=0)
    ap.add_argument("-o", default="/dev/stdout")
    a = ap.parse_args()
    open(a.o, "w").write(gen(a.G, a.block, a.ld, a.st, a.stamp, a.style, a.ahead, a.order, a.warm))
```

```python
import sys, re
def ampify(s, amp=8):
    lab = "standalone__instancenorm__prompt_kernel:\n"
    pre = """    s_memrealtime s[50:51]
    s_load_dwordx2 s[52:53], s[0:1], 32
    v_readfirstlane_b32 s56, v0
"""
    post = """    s_waitcnt vmcnt(0)
    s_barrier
    s_cmp_lg_u32 s56, 0
    s_cbranch_scc1 L_end
    s_memrealtime s[46:47]
    s_sleep 127
    s_sleep 127
    s_sleep 127
    s_waitcnt lgkmcnt(0)
    s_not_b32 s54, s50
    s_mov_b64 exec, -1
    v_mov_b32 v4, s54
    v_mov_b32 v5, 0
    s_mov_b64 exec, 1
    global_atomic_umax v5, v4, s[52:53] sc1
L_w0:
    s_sleep 1
    s_memrealtime s[48:49]
    s_waitcnt lgkmcnt(0)
    s_sub_u32 s48, s48, s50
    s_cmp_lt_u32 s48, 2500
    s_cbranch_scc1 L_w0
    global_load_dword v4, v5, s[52:53] sc0 sc1
    s_waitcnt vmcnt(0)
    v_readfirstlane_b32 s54, v4
    s_not_b32 s54, s54
    s_sub_u32 s55, s46, s54
    s_min_u32 s55, s55, 3000
    s_mul_i32 s55, s55, %d
    s_add_u32 s55, s55, 3000
L_w1:
    s_sleep 1
    s_memrealtime s[48:49]
    s_waitcnt lgkmcnt(0)
    s_sub_u32 s48, s48, s54
    s_cmp_lt_u32 s48, s55
    s_cbranch_scc1 L_w1
""" % amp
    assert s.count(lab) == 1 and s.count("L_end:\n") == 1
    s = s.replace(lab, lab + pre).replace("L_end:\n", post + "L_end:\n")
    s = re.sub(r"next_free_sgpr \d+", "next_free_sgpr 58", s)
    return s
if __name__ == "__main__":
    open(sys.argv[2], "w").write(ampify(open(sys.argv[1]).read(), int(sys.argv[3]) if len(sys.argv) > 3 else 8))
```

```python
import sys, re
def add(s):
    lab = "standalone__instancenorm__prompt_kernel:\n"
    pre = """    s_load_dwordx2 s[52:53], s[0:1], 32
    s_load_dwordx2 s[60:61], s[0:1], 0
    s_load_dwordx2 s[62:63], s[0:1], 24
    v_readfirstlane_b32 s56, v0
"""
    post = """    s_waitcnt vmcnt(0)
    s_barrier
    s_or_b32 s56, s56, s2
    s_cmp_lg_u32 s56, 0
    s_cbranch_scc1 L_end
    s_sleep 127
    s_sleep 127
    s_sleep 127
    s_sleep 127
    s_sleep 127
    s_mov_b64 exec, -1
    v_mov_b32 v5, 0
    s_mov_b32 s70, 0          ; buffer
P_buf:
    s_mov_b64 s[64:65], 0     ; result
    s_mov_b32 s71, 13         ; page
P_page:
    s_mov_b32 s72, 0          ; votes
    s_mov_b32 s73, 1
P_ch:
    s_lshl_b32 s74, s71, 21
    s_lshl_b32 s75, s73, 16
    s_add_u32 s74, s74, s75
    s_add_u32 s74, s74, 0x4300
    s_add_u32 s75, s74, 0x2000
    s_waitcnt lgkmcnt(0)
    s_memtime s[76:77]
    s_waitcnt lgkmcnt(0)
    s_load_dword s80, s[60:61], s74
    s_waitcnt lgkmcnt(0)
    s_memtime s[78:79]
    s_waitcnt lgkmcnt(0)
    s_load_dword s80, s[60:61], s75
    s_waitcnt lgkmcnt(0)
    s_memtime s[82:83]
    s_waitcnt lgkmcnt(0)
    s_sub_u32 s76, s78, s76
    s_sub_u32 s78, s82, s78
    s_cmp_gt_u32 s78, s76
    s_addc_u32 s72, s72, 0
    s_add_u32 s73, s73, 1
    s_and_b32 s81, s73, 7
    s_cmp_eq_u32 s81, 0
    s_addc_u32 s73, s73, 0
    s_cmp_lt_u32 s73, 17
    s_cbranch_scc1 P_ch
    s_lshl_b64 s[64:65], s[64:65], 4
    s_or_b32 s64, s64, s72
    s_sub_u32 s71, s71, 1
    s_cmp_ge_i32 s71, 0
    s_cbranch_scc1 P_page
    v_mov_b32 v6, s64
    v_mov_b32 v7, s65
    v_mov_b32 v8, s60
    v_mov_b32 v9, s61
    s_mov_b64 exec, 1
    global_store_dwordx4 v5, v[6:9], s[52:53]
    s_mov_b64 exec, -1
    v_mov_b32 v5, 16
    s_mov_b64 s[60:61], s[62:63]
    s_add_u32 s70, s70, 1
    s_cmp_lt_u32 s70, 2
    s_cbranch_scc1 P_buf
    v_mov_b32 v5, 32
    v_mov_b32 v6, s76
    v_mov_b32 v7, s78
    s_getreg_b32 s76, hwreg(HW_REG_XCC_ID)
    v_mov_b32 v8, s76
    s_mov_b64 exec, 1
    global_store_dwordx4 v5, v[6:9], s[52:53]
"""
    assert s.count(lab) == 1 and s.count("L_end:\n") == 1
    s = s.replace(lab, lab + pre).replace("L_end:\n", post + "L_end:\n")
    s = re.sub(r"next_free_sgpr \d+", "next_free_sgpr 90", s)
    return s
if __name__ == "__main__":
    open(sys.argv[2], "w").write(add(open(sys.argv[1]).read()))
```

```python
import sys, re
def ampify(s, amp=8):
    lab = "standalone__instancenorm__prompt_kernel:\n"
    pre = """    s_memrealtime s[50:51]
    v_readfirstlane_b32 s56, v0
"""
    post = """    s_waitcnt vmcnt(0)
    s_barrier
    s_cmp_lg_u32 s56, 0
    s_cbranch_scc1 L_end
    s_memrealtime s[46:47]
    s_load_dwordx2 s[52:53], s[0:1], 32
    s_sleep 127
    s_sleep 127
    s_sleep 127
    s_waitcnt lgkmcnt(0)
    s_not_b32 s54, s50
    s_mov_b64 exec, -1
    v_mov_b32 v4, s54
    v_mov_b32 v5, 0
    s_mov_b64 exec, 1
    global_atomic_umax v5, v4, s[52:53] sc1
L_w0:
    s_sleep 1
    s_memrealtime s[48:49]
    s_waitcnt lgkmcnt(0)
    s_sub_u32 s48, s48, s50
    s_cmp_lt_u32 s48, 2500
    s_cbranch_scc1 L_w0
    global_load_dword v4, v5, s[52:53] sc0 sc1
    s_waitcnt vmcnt(0)
    v_readfirstlane_b32 s54, v4
    s_not_b32 s54, s54
    s_sub_u32 s55, s46, s54
    s_min_u32 s55, s55, 3000
    s_mul_i32 s55, s55, %d
    s_add_u32 s55, s55, 3000
L_w1:
    s_sleep 1
    s_memrealtime s[48:49]
    s_waitcnt lgkmcnt(0)
    s_sub_u32 s48, s48, s54
    s_cmp_lt_u32 s48, s55
    s_cbranch_scc1 L_w1
""" % amp
    if ";MARK1\n" in s:
        post = post.replace("    s_memrealtime s[46:47]\n", "", 1).replace("    v_mov_b32 v5, 0\n", "    s_getreg_b32 s55, hwreg(HW_REG_XCC_ID)\n    s_and_b32 s55, s55, 7\n    s_lshl_b32 s55, s55, 2\n    v_mov_b32 v5, s55\n")
        s = s.replace(";MARK1\n", "    s_memrealtime s[46:47]\n")
    assert s.count(lab) == 1 and s.count("L_end:\n") == 1
    s = s.replace(lab, lab + pre).replace("L_end:\n", post + "L_end:\n")
    s = re.sub(r"next_free_sgpr \d+", "next_free_sgpr 58", s)
    return s
if __name__ == "__main__":
    open(sys.argv[2], "w").write(ampify(open(sys.argv[1]).read(), int(sys.argv[3]) if len(sys.argv) > 3 else 8))
```

```python
import sys, re
def ampify(s, amp=8, only=-1, start=0):
    lab = "standalone__instancenorm__prompt_kernel:\n"
    pre = """    s_memrealtime s[50:51]
    v_readfirstlane_b32 s56, v0
"""
    post = """    s_waitcnt vmcnt(0)
    s_barrier
    s_cmp_lg_u32 s56, 0
    s_cbranch_scc1 L_end
    s_memrealtime s[46:47]
    s_load_dwordx2 s[52:53], s[0:1], 32
    s_sleep 127
    s_sleep 127
    s_sleep 127
    s_waitcnt lgkmcnt(0)
    s_not_b32 s54, s50
    s_mov_b64 exec, -1
    v_mov_b32 v4, s54
    v_mov_b32 v5, 0
    s_mov_b64 exec, 1
    global_atomic_umax v5, v4, s[52:53] sc1
L_w0:
    s_sleep 1
    s_memrealtime s[48:49]
    s_waitcnt lgkmcnt(0)
    s_sub_u32 s48, s48, s50
    s_cmp_lt_u32 s48, 2500
    s_cbranch_scc1 L_w0
    global_load_dword v4, v5, s[52:53] sc0 sc1
    s_waitcnt vmcnt(0)
    v_readfirstlane_b32 s54, v4
    s_not_b32 s54, s54
    s_sub_u32 s55, s46, s54
    s_min_u32 s55, s55, 3000
    s_mul_i32 s55, s55, %d
    s_add_u32 s55, s55, 3000
L_w1:
    s_sleep 1
    s_memrealtime s[48:49]
    s_waitcnt lgkmcnt(0)
    s_sub_u32 s48, s48, s54
    s_cmp_lt_u32 s48, s55
    s_cbranch_scc1 L_w1
""" % amp
    if ";MARK1\n" in s:
        post = post.replace("    s_memrealtime s[46:47]\n", "", 1).replace("    v_mov_b32 v5, 0\n", "    s_getreg_b32 s55, hwreg(HW_REG_XCC_ID)\n    s_and_b32 s55, s55, 7\n    s_lshl_b32 s55, s55, 2\n    v_mov_b32 v5, s55\n")
        s = s.replace(";MARK1\n", "    s_memrealtime s[46:47]\n")
    if only >= 0:
        post = post.replace("L_w0:\n", "    s_getreg_b32 s55, hwreg(HW_REG_XCC_ID, 0, 3)\n    s_cmp_lg_u32 s55, %d\n    s_cbranch_scc1 L_end\nL_w0:\n" % only)
    if start:
        post = post.replace("    s_not_b32 s54, s50\n", "    s_mov_b32 s46, s50\n    s_not_b32 s54, s50\n")
    assert s.count(lab) == 1 and s.count("L_end:\n") == 1
    s = s.replace(lab, lab + pre).replace("L_end:\n", post + "L_end:\n")
    s = re.sub(r"next_free_sgpr \d+", "next_free_sgpr 58", s)
    return s
if __name__ == "__main__":
    open(sys.argv[2], "w").write(ampify(open(sys.argv[1]).read(), int(sys.argv[3]) if len(sys.argv) > 3 else 8, int(sys.argv[4]) if len(sys.argv) > 4 else -1, int(sys.argv[5]) if len(sys.argv) > 5 else 0))
```
